```python
import torch

def _softmax(x, axis=-1):
    return torch.softmax(x, dim=axis)

def _gelu(x):
    return torch.nn.functional.gelu(x, approximate='tanh')

def _silu(x):
    return torch.nn.functional.silu(x)

def _sigmoid(x):
    return torch.sigmoid(x)

def _layernorm(x, axis=-1, eps=1e-05):
    m = x.mean(dim=axis, keepdim=True)
    v = x.var(dim=axis, keepdim=True, unbiased=False)
    return (x - m) / torch.sqrt(v + eps)

def _scatter_add(tgt, idx, src, axis=0):
    return tgt.clone().index_add_(axis, idx, src)

def _segment_sum(src, seg, n):
    out = torch.zeros((n,) + src.shape[1:], dtype=src.dtype)
    return out.index_add_(0, seg, src)

def _pad(x, pw):
    flat = tuple((v for pair in reversed(pw) for v in pair))
    return torch.nn.functional.pad(x, flat)
kernel_name = 'standalone__kv_cache_quant_pre_rope_vs_post_rope__prompt'

def setup_inputs():

    _w = lambda a: (lambda t: t.to(torch.bfloat16) if t.is_floating_point() else t)(torch.as_tensor(a))
    B, Sq, Skv = (1, 2048, 2048)
    H, Dh0 = (32, 128)
    G = 32 if 32 > 0 else Dh0
    G = max(2, G // 2 * 2)
    Dh = max(G, Dh0 // G * G)
    Skv = max(Skv, Sq)
    ng = Dh // G
    bits = 4 if 4 > 1 else 4
    bits = max(2, min(8, bits))
    qmax = (1 << bits) - 1
    half = Dh // 2
    inv = 1.0 / 10000.0 ** (torch.arange(half) / max(1, half))
    ang_k = torch.arange(Skv)[:, None] * inv[None, :]
    ang_q = torch.arange(Skv - Sq, Skv)[:, None] * inv[None, :]
    kc = torch.cat([torch.cos(ang_k), torch.cos(ang_k)], dim=-1)
    ks = torch.cat([torch.sin(ang_k), torch.sin(ang_k)], dim=-1)
    qc = torch.cat([torch.cos(ang_q), torch.cos(ang_q)], dim=-1)
    qs = torch.cat([torch.sin(ang_q), torch.sin(ang_q)], dim=-1)
    qk_i = torch.randint(0, qmax + 1, (B, H, Skv, Dh)).to(torch.int32)
    qv_i = torch.randint(0, qmax + 1, (B, H, Skv, Dh)).to(torch.int32)
    ksc = torch.abs((lambda *s: torch.randn(*s, dtype=torch.bfloat16) * 0.2)(B, H, Skv, ng)) * 0.1 + 0.01
    kzp = torch.full((B, H, Skv, ng), qmax / 2.0)
    vsc = torch.abs((lambda *s: torch.randn(*s, dtype=torch.bfloat16) * 0.2)(B, H, Skv, ng)) * 0.1 + 0.01
    vzp = torch.full((B, H, Skv, ng), qmax / 2.0)
    return {'q': _w((lambda *s: torch.randn(*s, dtype=torch.bfloat16) * 6.4)(B, H, Sq, Dh) * 0.5), 'qk': _w(qk_i), 'k_scales': _w(ksc), 'k_zeros': _w(kzp), 'qv': _w(qv_i), 'v_scales': _w(vsc), 'v_zeros': _w(vzp), 'q_cos': _w(qc), 'q_sin': _w(qs), 'k_cos': _w(kc), 'k_sin': _w(ks)}

def reference(q, qk, k_scales, k_zeros, qv, v_scales, v_zeros, q_cos, q_sin, k_cos, k_sin):
    B, H, Sq, Dh = q.shape
    ng = k_scales.shape[-1]
    G = Dh // ng
    half = Dh // 2
    ks = (lambda x, n, axis: torch.repeat_interleave(x, n, dim=axis))(k_scales, G, axis=-1)
    kz = (lambda x, n, axis: torch.repeat_interleave(x, n, dim=axis))(k_zeros, G, axis=-1)
    k = ((lambda x, dt: x.to(dt))(qk, q.dtype) - kz) * ks
    vs = (lambda x, n, axis: torch.repeat_interleave(x, n, dim=axis))(v_scales, G, axis=-1)
    vz = (lambda x, n, axis: torch.repeat_interleave(x, n, dim=axis))(v_zeros, G, axis=-1)
    v = ((lambda x, dt: x.to(dt))(qv, q.dtype) - vz) * vs
    k1 = k[..., :half].clone()
    k2 = k[..., half:].clone()
    krh = torch.concatenate([-k2, k1], axis=-1)
    kr = k * k_cos[None, None, :, :] + krh * k_sin[None, None, :, :]
    q1 = q[..., :half].clone()
    q2 = q[..., half:].clone()
    qrh = torch.concatenate([-q2, q1], axis=-1)
    qr = q * q_cos[None, None, :, :] + qrh * q_sin[None, None, :, :]
    logits = torch.einsum('bhqd,bhkd->bhqk', qr, kr) * float(Dh) ** (-0.5)
    attn = _softmax(logits, axis=-1)
    out = torch.einsum('bhqk,bhkd->bhqd', attn, v)
    return out
```

```python
import re

def v(i, n=1):
    return f"v{i}" if n == 1 else f"v[{i}:{i+n-1}]"
def a(i, n=1):
    return f"a{i}" if n == 1 else f"a[{i}:{i+n-1}]"
def s(i, n=1):
    return f"s{i}" if n == 1 else f"s[{i}:{i+n-1}]"

_REG = re.compile(r"^-?\|?([vas])(?:(\d+)|\[(\d+):(\d+)\])\|?$")

def regs_of(op):
    op = op.strip()
    if op in ("vcc",):
        return {("s", 106), ("s", 107)}
    if op == "exec":
        return {("s", 126), ("s", 127)}
    if op == "m0":
        return {("s", 124)}
    m = _REG.match(op)
    if not m:
        return set()
    k = m.group(1)
    if m.group(2) is not None:
        return {(k, int(m.group(2)))}
    return {(k, i) for i in range(int(m.group(3)), int(m.group(4)) + 1)}

TRANS = ("v_exp_f32", "v_log_f32", "v_rcp_f32", "v_rsq_f32", "v_sqrt_f32", "v_sin_f32", "v_cos_f32")

class Ins:
    __slots__ = ("text", "op", "kind", "wr", "rd", "rdA", "rdC", "ws", "label", "passes", "tag")
    def __init__(self, text, op="", kind="other", wr=(), rd=(), rdA=(), rdC=(), ws=1, label=None, passes=0, tag=None):
        self.text = text; self.op = op; self.kind = kind
        self.wr = set(wr); self.rd = set(rd); self.rdA = set(rdA); self.rdC = set(rdC)
        self.ws = ws; self.label = label; self.passes = passes; self.tag = tag

class Asm:
    def __init__(self):
        self.ins = []
    def raw(self, text):
        self.ins.append(Ins(text, kind="raw", ws=0))
    def label(self, name):
        self.ins.append(Ins(name + ":", kind="label", ws=0, label=name))
    def comment(self, t):
        self.ins.append(Ins("; " + t, kind="raw", ws=0))
    def add(self, ins):
        self.ins.append(ins); return ins
    def I(self, text, tag=None):
        self.ins.append(mk(text, tag)); return self.ins[-1]
    def extend(self, lst):
        self.ins.extend(lst)
    def text(self):
        out = []
        for i in self.ins:
            if i.kind in ("label",):
                out.append(i.text)
            elif i.kind == "raw":
                out.append(i.text)
            else:
                out.append("    " + i.text)
        return "\n".join(out) + "\n"

def mk(text, tag=None):
    t = text.split(";")[0].strip()
    parts = t.split(None, 1)
    op = parts[0]
    ops = []
    if len(parts) > 1:
        ops = [x.strip() for x in parts[1].split(",")]
        last = ops[-1].split()
        ops[-1] = last[0] if last else ""
        mods = last[1:]
    else:
        mods = []
    base = re.sub(r"_(e32|e64|dpp|sdwa)$", "", op)
    R = [regs_of(o) for o in ops]
    if base.startswith("v_mfma"):
        passes = 8 if "32x32x16" in base else 4
        return Ins(text, base, "mfma", wr=R[0], rd=R[1] | R[2] | R[3], rdA=R[1] | R[2], rdC=R[3], passes=passes, tag=tag)
    if base.startswith("v_cmp"):
        return Ins(text, base, "valu", wr=R[0], rd=set().union(*R[1:]), tag=tag)
    if base in ("v_permlane32_swap_b32", "v_permlane16_swap_b32", "v_swap_b32"):
        return Ins(text, base, "permlane", wr=R[0] | R[1], rd=R[0] | R[1], tag=tag)
    if base in ("v_readfirstlane_b32", "v_readlane_b32"):
        return Ins(text, base, "readlane", wr=R[0], rd=set().union(*R[1:]), tag=tag)
    if base.startswith("v_"):
        rd = set().union(*R[1:]) if len(R) > 1 else set()
        wr = R[0]
        if base in ("v_fmac_f32", "v_dot2c_f32_bf16", "v_pk_fmac_f16"):
            rd |= R[0]
        if base in ("v_cndmask_b32",) and len(ops) == 3:
            rd |= regs_of("vcc")
        if base in ("v_add_co_u32", "v_addc_co_u32", "v_sub_co_u32"):
            wr = R[0] | R[1]; rd = set().union(*R[2:])
        kind = "trans" if base in TRANS else "valu"
        return Ins(text, base, kind, wr=wr, rd=rd, tag=tag)
    if base.startswith("ds_read") or base.startswith("ds_bpermute") or base.startswith("ds_swizzle"):
        return Ins(text, base, "ds", wr=R[0], rd=set().union(*R[1:]), tag=tag)
    if base.startswith("ds_write"):
        return Ins(text, base, "ds", rd=set().union(*R), tag=tag)
    if base.startswith("buffer_load") or base.startswith("global_load"):
        if "lds" in mods or "_lds_" in base:
            return Ins(text, base, "dma", rd=set().union(*R) | regs_of("m0"), tag=tag)
        return Ins(text, base, "vmem", wr=R[0], rd=set().union(*R[1:]), tag=tag)
    if base.startswith("buffer_store") or base.startswith("global_store") or base.startswith("buffer_atomic") or base.startswith("global_atomic"):
        i = Ins(text, base, "store", rd=set().union(*R), tag=tag)
        return i
    if base == "s_nop":
        return Ins(text, base, "nop", ws=int(ops[0], 0) + 1, tag=tag)
    if base.startswith("s_"):
        if base.startswith("s_cmp") or base.startswith("s_cbranch") or base in ("s_branch", "s_waitcnt", "s_barrier", "s_endpgm", "s_setprio", "s_sleep"):
            return Ins(text, base, "salu", rd=set().union(*R) if R else set(), tag=tag)
        return Ins(text, base, "salu", wr=R[0] if R else set(), rd=set().union(*R[1:]) if len(R) > 1 else set(), tag=tag)
    return Ins(text, base, "other", tag=tag)

def check_hazards(seq, name=""):
    probs = []
    real = [i for i in seq if i.kind not in ("raw", "label")]
    n = len(real)
    VAL = ("valu", "trans", "permlane", "readlane")
    for j, c in enumerate(real):
        dist = 0
        for k in range(j - 1, max(-1, j - 24), -1):
            p = real[k]
            need = 0; why = ""
            if p.kind == "mfma":
                D = p.wr
                P = p.passes
                if c.kind == "mfma":
                    if c.rdA & D:
                        need, why = {8: 12, 4: 8}[P], "mfma D->mfma A/B"
                    elif c.rdC & D:
                        if c.rdC == D and c.passes == P:
                            need = 0
                        else:
                            need, why = {8: 10, 4: 6}[P], "mfma D->overlap C"
                    elif c.wr & D:
                        need, why = {8: 10, 4: 6}[P], "mfma D->mfma D WAW(diff C)"
                elif c.kind in VAL or c.kind in ("ds", "vmem", "store", "dma"):
                    if (c.rd | c.wr) & D:
                        need, why = {8: 12, 4: 8}[P], "mfma D->valu/mem"
                if c.kind in VAL and (c.wr & p.rdC) and not (c.wr & D):
                    need2 = {8: 7, 4: 3}[P]
                    if need2 > need:
                        need, why = need2, "mfma C WAR"
            elif p.kind in VAL:
                if c.kind == "mfma" and (c.rd & p.wr):
                    need, why = 2, "valu->mfma"
                if p.kind == "trans" and c.kind in ("valu", "permlane", "readlane") and (c.rd & p.wr):
                    need, why = max(need, 1), "trans->valu"
                if c.kind == "permlane" and (c.rd & p.wr):
                    need, why = max(need, 2), "valu->permlane"
                if c.kind == "readlane" and (c.rd & p.wr):
                    need, why = max(need, 1), "valu->readlane"
                sw = {r for r in p.wr if r[0] == "s"}
                if sw:
                    if c.kind in VAL and (c.rd & sw):
                        need, why = max(need, 2), "valu sgpr->valu"
                    if c.kind in ("vmem", "store", "dma") and (c.rd & sw):
                        need, why = max(need, 5), "valu sgpr->vmem"
                if "dpp" in c.text and (c.rd & p.wr):
                    need, why = max(need, 2), "valu->dpp"
            elif p.kind == "salu":
                if ("s", 124) in p.wr and c.kind == "dma":
                    need, why = 1, "m0->dma"
            elif p.kind == "store":
                if ("x4" in p.op or "x3" in p.op) and c.kind in VAL:
                    data = regs_of(p.text.split(None, 1)[1].split(",")[0])
                    if c.wr & data:
                        need, why = 2, "store data WAR"
            if need > dist:
                probs.append(f"{name}: need {need} have {dist} [{why}]: '{p.text}' -> '{c.text}'")
            dist += p.ws
    return probs
```

```python
import sys, math, struct
from asmlib import *

KN = "standalone__kv_cache_quant_pre_rope_vs_post_rope__prompt"
HEADER = open("cdna_kernels/" + KN + ".s.ref").read().split("; Override launch")[0]

def f32bits(x):
    return struct.unpack("<I", struct.pack("<f", x))[0]

KA = dict(q=0, qk=8, ksc=16, kz=24, qv=32, vsc=40, vz=48, qcos=56, qsin=64, kcos=72, ksin=80, out=88, dbg=96, ws=104)

def srd(A, d, base, nbytes):
    A.I(f"s_mov_b32 s{d}, s{base}")
    A.I(f"s_and_b32 s{d+1}, s{base+1}, 0xffff")
    A.I(f"s_mov_b32 s{d+2}, {nbytes:#x}")
    A.I(f"s_mov_b32 s{d+3}, 0x20000")

def unpack(A, lo, hi, src):
    A.I(f"v_lshlrev_b32 v{lo}, 16, v{src}")
    A.I(f"v_and_b32 v{hi}, 0xffff0000, v{src}")

def rnd2(A, x0, x1, tmp):
    A.I(f"v_cvt_pk_bf16_f32 v{tmp}, v{x0}, v{x1}")
    unpack(A, x0, x1, tmp)

def gen_prep(opt):
    A = Asm()
    name = "prep_kernel"
    A.raw(f".globl {name}\n.p2align 8\n.type {name},@function")
    A.label(name)
    A.I("s_cmp_ge_u32 s2, 1024")
    A.I("s_cbranch_scc1 L_prep_done")
    A.I("s_load_dwordx4 s[36:39], s[0:1], 8")
    A.I("s_load_dwordx4 s[40:43], s[0:1], 24")
    A.I("s_load_dwordx4 s[44:47], s[0:1], 40")
    A.I("s_load_dwordx4 s[48:51], s[0:1], 72")
    A.I("s_load_dwordx2 s[52:53], s[0:1], 104")
    A.I("s_and_b32 s54, s2, 7")
    A.I("s_lshr_b32 s55, s2, 3")
    A.I("s_and_b32 s55, s55, 3")
    A.I("s_lshl_b32 s55, s55, 3")
    A.I("s_add_u32 s54, s54, s55")
    A.I("s_lshr_b32 s55, s2, 5")
    A.I("v_lshrrev_b32 v1, 6, v0")
    A.I("v_and_b32 v0, 63, v0")
    A.I("v_readfirstlane_b32 s56, v1")
    A.I("v_lshrrev_b32 v2, 3, v0")
    A.I("v_and_b32 v3, 7, v0")
    A.I("v_lshlrev_b32 v4, 9, v2")
    A.I("v_lshl_add_u32 v4, v3, 5, v4")
    A.I("v_lshrrev_b32 v5, 1, v4")
    A.I("v_lshlrev_b32 v6, 3, v2")
    A.I("v_lshrrev_b32 v7, 1, v3")
    A.I("v_lshlrev_b32 v7, 10, v7")
    A.I("v_and_b32 v8, 1, v3")
    A.I("v_lshl_add_u32 v7, v8, 9, v7")
    A.I("v_lshl_add_u32 v7, v2, 4, v7")
    A.I("v_lshrrev_b32 v8, 5, v0")
    A.I("v_and_b32 v9, 31, v0")
    A.I("v_lshlrev_b32 v10, 11, v8")
    A.I("v_lshl_add_u32 v10, v9, 4, v10")
    A.I("v_lshlrev_b32 v11, 1, v0")
    A.I("v_lshrrev_b32 v12, 3, v9")
    A.I("v_lshlrev_b32 v13, 10, v12")
    A.I("v_lshl_add_u32 v13, v8, 9, v13")
    A.I("v_and_b32 v14, 7, v9")
    A.I("v_lshl_add_u32 v13, v14, 6, v13")
    A.I("v_lshrrev_b32 v14, 2, v3")
    A.I("v_lshlrev_b32 v14, 4, v14")
    A.I("v_sub_u32 v14, 16, v14")
    A.I("v_and_b32 v15, 3, v0")
    A.I("v_lshlrev_b32 v15, 4, v15")
    A.I("v_lshrrev_b32 v1, 2, v0")
    A.I("v_add_u32 v15, v15, v1")
    A.I("v_lshlrev_b32 v15, 3, v15")
    A.I("v_lshlrev_b32 v1, 4, v12")
    A.I("v_lshl_add_u32 v1, v8, 2, v1")
    A.I("v_lshlrev_b32 v1, 3, v1")
    A.I("s_lshl_b32 s57, s56, 9")
    A.I("v_add_u32 v15, s57, v15")
    A.I("v_add_u32 v1, s57, v1")
    A.I("s_lshl_b32 s58, s55, 6")
    A.I("s_lshl_b32 s59, s56, 4")
    A.I("s_add_u32 s58, s58, s59")
    A.I("s_lshl_b32 s59, s54, 11")
    A.I("s_add_u32 s59, s59, s58")
    A.I("s_lshl_b32 s60, s59, 9")
    A.I("s_add_u32 s61, s60, 4096")
    A.I("s_lshl_b32 s62, s58, 8")
    A.I("s_lshl_b32 s63, s59, 3")
    A.I("s_lshl_b32 s64, s54, 20")
    A.I("s_lshl_b32 s65, s55, 15")
    A.I("s_add_u32 s64, s64, s65")
    A.I("s_lshr_b32 s65, s56, 1")
    A.I("s_lshl_b32 s65, s65, 14")
    A.I("s_add_u32 s64, s64, s65")
    A.I("s_and_b32 s65, s56, 1")
    A.I("s_lshl_b32 s66, s65, 8")
    A.I("s_add_u32 s66, s66, s64")
    A.I("s_add_u32 s67, s66, 4096")
    A.I("s_lshl_b32 s68, s65, 12")
    A.I("s_add_u32 s68, s68, s64")
    A.I("s_add_u32 s68, s68, 8192")
    A.I("s_waitcnt lgkmcnt(0)")
    srd(A, 4, 36, 33554432)
    srd(A, 8, 38, 524288)
    srd(A, 12, 40, 524288)
    srd(A, 16, 42, 33554432)
    srd(A, 20, 44, 524288)
    srd(A, 24, 46, 524288)
    srd(A, 28, 48, 524288)
    srd(A, 32, 50, 524288)
    srd(A, 72, 52, 33554432)
    ld = opt.get("prep_ld", "")
    st = opt.get("prep_st", "")
    KR = 16
    CS = 48
    SC = 80
    VR = 88
    VS = 120
    TT = [0, 2, 3, 4, 5, 6, 8, 9, 10, 12]
    T = TT[0]; T1 = TT[1]
    A.I(f"buffer_load_ushort v{VS}, v11, s[20:23], s63 offen")
    A.I(f"buffer_load_ushort v{VS+1}, v11, s[24:27], s63 offen")
    for pp in range(2):
        so = "s60" if pp == 0 else "s61"
        for j, off in enumerate((0, 16, 256, 272)):
            A.I(f"buffer_load_dwordx4 v[{KR+16*pp+4*j}:{KR+16*pp+4*j+3}], v4, s[4:7], {so} offen offset:{off} {ld}")
        for j, (sr, off) in enumerate(((28, 0), (28, 128), (32, 0), (32, 128))):
            A.I(f"buffer_load_dwordx4 v[{CS+16*pp+4*j}:{CS+16*pp+4*j+3}], v5, s[{sr}:{sr+3}], s62 offen offset:{off+pp*2048}")
        A.I(f"buffer_load_dwordx2 v[{SC+4*pp}:{SC+4*pp+1}], v6, s[8:11], s63 offen offset:{pp*64}")
        A.I(f"buffer_load_dwordx2 v[{SC+4*pp+2}:{SC+4*pp+3}], v6, s[12:15], s63 offen offset:{pp*64}")
    for i in range(8):
        so = "s60" if i < 4 else "s61"
        A.I(f"buffer_load_dwordx4 v[{VR+4*i}:{VR+4*i+3}], v10, s[16:19], {so} offen offset:{(i&3)*512} {ld}")
    A.I("s_waitcnt vmcnt(28)")
    A.I(f"v_lshlrev_b32 v{VS}, 16, v{VS}")
    A.I(f"v_lshlrev_b32 v{VS+1}, 16, v{VS+1}")
    A.I(f"ds_write_b64 v15, v[{VS}:{VS+1}]")
    for pp in range(2):
        A.I(f"s_waitcnt vmcnt({18 if pp == 0 else 10})")
        sc = SC + 4 * pp
        for j in range(4):
            A.I(f"v_lshlrev_b32 v{sc+j}, v14, v{sc+j}")
            A.I(f"v_and_b32 v{sc+j}, 0xffff0000, v{sc+j}")
        s_lo, s_hi, z_lo, z_hi = sc, sc + 1, sc + 2, sc + 3
        kr = KR + 16 * pp; cs = CS + 16 * pp
        for t in range(4):
            x0, x1 = kr + 2 * t, kr + 2 * t + 1
            y0, y1 = kr + 8 + 2 * t, kr + 8 + 2 * t + 1
            for r in (x0, x1, y0, y1):
                A.I(f"v_cvt_f32_i32 v{r}, v{r}")
            rnd2(A, x0, x1, T); rnd2(A, y0, y1, T1)
            A.I(f"v_sub_f32 v{x0}, v{x0}, v{z_lo}"); A.I(f"v_sub_f32 v{x1}, v{x1}, v{z_lo}")
            A.I(f"v_sub_f32 v{y0}, v{y0}, v{z_hi}"); A.I(f"v_sub_f32 v{y1}, v{y1}, v{z_hi}")
            rnd2(A, x0, x1, T); rnd2(A, y0, y1, T1)
            A.I(f"v_mul_f32 v{x0}, v{x0}, v{s_lo}"); A.I(f"v_mul_f32 v{x1}, v{x1}, v{s_lo}")
            A.I(f"v_mul_f32 v{y0}, v{y0}, v{s_hi}"); A.I(f"v_mul_f32 v{y1}, v{y1}, v{s_hi}")
            rnd2(A, x0, x1, T); rnd2(A, y0, y1, T1)
            cl, ch, sl, sh = cs + t, cs + 4 + t, cs + 8 + t, cs + 12 + t
            a0, a1, b0, b1, e0, e1, f0, f1 = TT[2:10]
            unpack(A, a0, a1, cl); unpack(A, b0, b1, sl); unpack(A, e0, e1, ch); unpack(A, f0, f1, sh)
            A.I(f"v_mul_f32 v{a0}, v{x0}, v{a0}"); A.I(f"v_mul_f32 v{a1}, v{x1}, v{a1}")
            A.I(f"v_mul_f32 v{b0}, v{y0}, v{b0}"); A.I(f"v_mul_f32 v{b1}, v{y1}, v{b1}")
            A.I(f"v_mul_f32 v{e0}, v{y0}, v{e0}"); A.I(f"v_mul_f32 v{e1}, v{y1}, v{e1}")
            A.I(f"v_mul_f32 v{f0}, v{x0}, v{f0}"); A.I(f"v_mul_f32 v{f1}, v{x1}, v{f1}")
            rnd2(A, a0, a1, T); rnd2(A, b0, b1, T1); rnd2(A, e0, e1, T); rnd2(A, f0, f1, T1)
            A.I(f"v_sub_f32 v{a0}, v{a0}, v{b0}"); A.I(f"v_sub_f32 v{a1}, v{a1}, v{b1}")
            A.I(f"v_add_f32 v{e0}, v{e0}, v{f0}"); A.I(f"v_add_f32 v{e1}, v{e1}, v{f1}")
            A.I(f"v_cvt_pk_bf16_f32 v{cl}, v{a0}, v{a1}")
            A.I(f"v_cvt_pk_bf16_f32 v{ch}, v{e0}, v{e1}")
        A.I(f"buffer_store_dwordx4 v[{cs}:{cs+3}], v7, s[72:75], s66 offen offset:{pp*128} {st}")
        A.I(f"buffer_store_dwordx4 v[{cs+4}:{cs+7}], v7, s[72:75], s67 offen offset:{pp*128} {st}")
    SZ = KR
    A.I("s_waitcnt lgkmcnt(0)")
    A.I(f"ds_read_b128 v[{SZ}:{SZ+3}], v1")
    A.I(f"ds_read_b128 v[{SZ+4}:{SZ+7}], v1 offset:16")
    A.I(f"ds_read_b128 v[{SZ+8}:{SZ+11}], v1 offset:64")
    A.I(f"ds_read_b128 v[{SZ+12}:{SZ+15}], v1 offset:80")
    A.I("s_waitcnt vmcnt(4) lgkmcnt(0)")
    VO = KR + 16
    for i in range(8):
        r = VR + 4 * i
        sc, z = SZ + 2 * i, SZ + 2 * i + 1
        for e in range(4):
            A.I(f"v_cvt_f32_i32 v{r+e}, v{r+e}")
        rnd2(A, r, r + 1, T); rnd2(A, r + 2, r + 3, T1)
        for e in range(4):
            A.I(f"v_sub_f32 v{r+e}, v{r+e}, v{z}")
        rnd2(A, r, r + 1, T); rnd2(A, r + 2, r + 3, T1)
        for e in range(4):
            A.I(f"v_mul_f32 v{r+e}, v{r+e}, v{sc}")
        if i & 1:
            t = i >> 1
            for e in range(4):
                A.I(f"v_cvt_pk_bf16_f32 v{VO+4*e+t}, v{r-4+e}, v{r+e}")
    for e in range(4):
        A.I(f"buffer_store_dwordx4 v[{VO+4*e}:{VO+4*e+3}], v13, s[72:75], s68 offen offset:{e*16} {st}")
    A.label("L_prep_done")
    A.I("s_endpgm")
    probs = check_hazards(A.ins, "prep")
    kd = f"""
.amdhsa_kernel {name}
  .amdhsa_next_free_vgpr 124
  .amdhsa_next_free_sgpr 80
  .amdhsa_accum_offset 124
  .amdhsa_group_segment_fixed_size 0
  .amdhsa_kernarg_size 112
  .amdhsa_user_sgpr_count 2
  .amdhsa_user_sgpr_kernarg_segment_ptr 1
  .amdhsa_system_sgpr_workgroup_id_x 1
  .amdhsa_float_denorm_mode_32 3
  .amdhsa_float_denorm_mode_16_64 3
.end_amdhsa_kernel
"""
    return A, kd, probs, f"; @launch kernel={name} grid=(1024,1,1) block=(256,1,1) lds=2048"


V_LANE, V_A, V_DMA, V_IO = 0, 1, 3, 4
V_T = [8, 12]
V_LS = [16, 17]; V_L = [18, 19]
V_R = 20
V_S = [32, 48]; V_NM = [64, 80]; V_P = [96, 104]
V_Q = 112
V_COS = 176; V_SIN = 32; V_PT = 240
A_O = 0; A_K = 128; A_V = [160, 192]
S_WS, S_QS, S_COS, S_SIN, S_OUT = 4, 8, 12, 16, 20
S_HEAD, S_QC, S_W, S_OFF, S_LDS, S_THR, S_SITE, S_OFF2, S_QOFF, S_COFF, S_TMP = 24, 25, 26, 27, 28, 29, 30, 31, 32, 33, 34
SCALE = math.log2(math.e) / math.sqrt(128.0)

def qreg(b, s_):
    return V_Q + b * 32 + s_ * 4

class Attn:
    def __init__(self, opt):
        self.opt = opt
        self.A = Asm()
        self.sites = {0: [], 1: []}
        self.nsite = 0

    def mfma(self, p, t):
        if t < 8 or 16 <= t < 24:
            b = 0 if t < 8 else 1
            s_ = t & 7
            if not (0 <= p + 1 <= 63) or p == -1:
                return None
            D = V_S[b]
            C = v(V_NM[b], 16) if s_ == 0 else v(D, 16)
            return mk(f"v_mfma_f32_32x32x16_bf16 {v(D,16)}, {a(A_K+4*s_,4)}, {v(qreg(b,s_),4)}, {C}", tag=("useK", s_))
        b = 0 if t < 16 else 1
        f = t & 7
        if p < 0:
            return None
        j2, db = f >> 2, f & 3
        O = A_O + (b * 4 + db) * 16
        return mk(f"v_mfma_f32_32x32x16_bf16 {a(O,16)}, {a(A_V[p&1]+4*f,4)}, {v(V_P[b]+4*j2,4)}, {a(O,16)}", tag=("useV", p & 1, f))

    def sm_items(self, b, tau, check=True):
        out = []
        T = V_T[b]; S = V_S[b]; ls = V_LS[b]
        e64 = "_e64" if self.opt.get("e64") else ""
        if 0 <= tau < 16:
            k, h = tau >> 1, tau & 1
            out.append(mk(f"v_exp_f32{e64} v{T+(k&1)*2+h}, v{S+2*k+h}"))
        if 2 <= tau < 18:
            k, h = (tau - 2) >> 1, (tau - 2) & 1
            t0 = T + (k & 1) * 2
            if h == 0:
                if k >= 1:
                    out.append(mk(f"v_add_f32{e64} v{ls}, v{ls}, v{t0}"))
                out.append(mk(f"v_cvt_pk_bf16_f32 v{V_P[b]+k}, v{t0}, v{t0+1}"))
            else:
                if k == 0:
                    out.append(mk(f"v_add_f32{e64} v{ls}, v{t0}, v{t0+1}"))
                else:
                    out.append(mk(f"v_add_f32{e64} v{ls}, v{ls}, v{t0+1}"))
        if tau == 18 and check:
            sid = self.nsite; self.nsite += 1
            self.sites[b].append(sid)
            out.append(mk(f"v_cmp_lt_f32 vcc, s{S_THR}, v{ls}"))
            out.append(mk(f"s_cbranch_vccnz L_tramp{sid}"))
            out.append(Ins(f"L_ret{sid}:", kind="label", ws=0, label=f"L_ret{sid}"))
        if tau == 19:
            out.append(mk(f"v_add_f32{e64} v{V_L[b]}, v{V_L[b]}, v{ls}"))
        return out

    def fillers(self, p, t):
        out = []
        if 0 <= p <= 63 and t + 32 - 26 <= 19:
            out += self.sm_items(1, t + 32 - 26, check=(p != 0))
        if 0 <= p + 1 <= 63:
            if 10 <= t <= 29:
                out += self.sm_items(0, t - 10, check=(p + 1 != 0))
            if t >= 26:
                out += self.sm_items(1, t - 26)
        if t & 1:
            if t < 16 and 0 <= p + 1 <= 63:
                f = t >> 1; U = p + 1
                out.append(mk(f"ds_read_b128 {a(A_V[U&1]+4*f,4)}, v{V_A} offset:{(U&1)*16384+8192+f*1024}", tag=("ldV", U & 1, f)))
            if t > 16 and 0 <= p + 2 <= 63:
                s_ = (t - 17) >> 1; U = p + 2
                out.append(mk(f"ds_read_b128 {a(A_K+4*s_,4)}, v{V_A} offset:{(U&1)*16384+s_*1024}", tag=("ldK", s_)))
        return out

    def emit_slots(self, p, t0, t1, extras=None):
        extras = extras or {}
        seq = []
        for t in range(t0, t1):
            seq += extras.get(("pre", t), [])
            if t in (0, 4) and 0 <= p + 1 <= 63 and p >= 0:
                seq.append(Ins("s_waitcnt lgkmcnt(?)", op="s_waitcnt", kind="salu", tag=("waitK", t)))
            m = self.mfma(p, t)
            if m is not None:
                seq.append(m)
            seq += self.fillers(p, t)
            seq += extras.get(t, [])
        return seq

def resolve_lgkm(seq_before, seq):
    allseq = seq_before + seq
    base = len(seq_before)
    for j in range(base, len(allseq)):
        ins = allseq[j]
        if ins.tag and ins.tag[0] == "waitK":
            last = ins.tag[1] + 3
            n = 0
            found = False
            for k in range(j - 1, -1, -1):
                q = allseq[k]
                if q.kind == "ds":
                    if q.tag == ("ldK", last):
                        found = True
                        break
                    n += 1
            assert found, "no K load found"
            ins.text = f"s_waitcnt lgkmcnt({n})"

def verify_lgkm(seq):
    pend = []
    for ins in seq:
        if ins.kind == "ds":
            pend.append(ins.wr)
        elif ins.op == "s_waitcnt" and "lgkmcnt" in ins.text:
            import re
            n = int(re.search(r"lgkmcnt\((\d+)\)", ins.text).group(1))
            if n < len(pend):
                pend = pend[len(pend) - n:] if n else []
        elif ins.kind in ("mfma", "valu", "trans"):
            for w in pend:
                if w & ins.rd:
                    raise AssertionError("uncovered LDS read used by " + ins.text)

def gen_attn(opt):
    G = Attn(opt)
    A = G.A
    name = KN + "_kernel"
    A.raw(f".globl {name}\n.p2align 8\n.type {name},@function")
    A.label(name)
    A.I("s_cmp_ge_u32 s2, 256")
    A.I("s_cbranch_scc1 L_attn_done")
    A.I("s_load_dwordx2 s[36:37], s[0:1], 0")
    A.I("s_load_dwordx4 s[40:43], s[0:1], 56")
    A.I("s_load_dwordx2 s[44:45], s[0:1], 88")
    A.I("s_load_dwordx2 s[46:47], s[0:1], 104")
    A.I(f"s_and_b32 s{S_HEAD}, s2, 7")
    A.I(f"s_lshr_b32 s{S_TMP}, s2, 3")
    A.I(f"s_and_b32 s{S_TMP}, s{S_TMP}, 3")
    A.I(f"s_lshl_b32 s{S_TMP}, s{S_TMP}, 3")
    A.I(f"s_add_u32 s{S_HEAD}, s{S_HEAD}, s{S_TMP}")
    A.I(f"s_lshr_b32 s{S_QC}, s2, 5")
    A.I("v_lshrrev_b32 v1, 6, v0")
    A.I(f"v_and_b32 v{V_LANE}, 63, v0")
    A.I(f"v_readfirstlane_b32 s{S_W}, v1")
    A.I(f"v_lshlrev_b32 v{V_A}, 4, v{V_LANE}")
    A.I(f"v_and_b32 v5, 31, v{V_LANE}")
    A.I(f"v_lshrrev_b32 v6, 5, v{V_LANE}")
    A.I(f"v_lshlrev_b32 v{V_IO}, 8, v5")
    A.I(f"v_lshl_add_u32 v{V_IO}, v6, 4, v{V_IO}")
    A.I(f"s_lshl_b32 s{S_LDS}, s{S_W}, 13")
    A.I(f"v_add_u32 v{V_DMA}, s{S_LDS}, v{V_A}")
    A.I(f"s_lshl_b32 s{S_COFF}, s{S_QC}, 16")
    A.I(f"s_lshl_b32 s{S_TMP}, s{S_W}, 14")
    A.I(f"s_add_u32 s{S_COFF}, s{S_COFF}, s{S_TMP}")
    A.I(f"s_lshl_b32 s{S_QOFF}, s{S_HEAD}, 19")
    A.I(f"s_add_u32 s{S_QOFF}, s{S_QOFF}, s{S_COFF}")
    A.I(f"s_mov_b32 s{S_THR}, {f32bits(65536.0):#x}")
    A.I(f"s_mov_b32 s{S_SITE}, 0")
    A.I("s_waitcnt lgkmcnt(0)")
    srd(A, S_QS, 36, 16777216)
    srd(A, S_COS, 40, 524288)
    srd(A, S_SIN, 42, 524288)
    srd(A, S_OUT, 44, 16777216)
    A.I(f"s_lshl_b32 s{S_TMP}, s{S_HEAD}, 20")
    A.I(f"s_add_u32 s46, s46, s{S_TMP}")
    A.I(f"s_addc_u32 s47, s47, 0")
    srd(A, S_WS, 46, 1048576)
    A.I(f"s_add_u32 s35, s{S_QOFF}, 8192")
    A.I(f"s_add_u32 s38, s{S_COFF}, 8192")
    for b in range(2):
        qo = f"s{S_QOFF}" if b == 0 else "s35"
        co = f"s{S_COFF}" if b == 0 else "s38"
        for s_ in range(8):
            A.I(f"buffer_load_dwordx4 {v(qreg(b,s_),4)}, v{V_IO}, {s(S_QS,4)}, {qo} offen offset:{s_*32}")
        for s_ in range(8):
            A.I(f"buffer_load_dwordx4 {v(V_COS+b*32+s_*4,4)}, v{V_IO}, {s(S_COS,4)}, {co} offen offset:{s_*32}")
        for s_ in range(8):
            A.I(f"buffer_load_dwordx4 {v(V_SIN+b*32+s_*4,4)}, v{V_IO}, {s(S_SIN,4)}, {co} offen offset:{s_*32}")
    def dma_stage(A, first=False):
        out = []
        out.append(mk(f"s_mov_b32 m0, s{S_LDS}"))
        out.append(mk(f"s_add_u32 s{S_OFF2}, s{S_OFF}, 4096"))
        for i in range(4):
            out.append(mk(f"buffer_load_dwordx4 v{V_DMA}, {s(S_WS,4)}, s{S_OFF} offen offset:{i*1024} lds"))
        out.append(mk(f"s_add_u32 m0, s{S_LDS}, 4096"))
        out.append(mk(f"s_add_u32 s{S_OFF}, s{S_OFF}, 32768"))
        for i in range(4):
            out.append(mk(f"buffer_load_dwordx4 v{V_DMA}, {s(S_WS,4)}, s{S_OFF2} offen offset:{i*1024} lds"))
        out.append(mk(f"s_add_u32 s{S_LDS}, s{S_LDS}, 32768"))
        out.append(mk(f"s_and_b32 s{S_LDS}, s{S_LDS}, 0x1ffff"))
        return out
    A.I(f"s_mov_b32 s{S_OFF}, 0")
    A.extend(dma_stage(A))
    A.I(f"s_mov_b32 s39, {f32bits(SCALE):#x}")
    def rope(b):
        for s_ in range(4):
            for t in range(4):
                q1, q2 = qreg(b, s_) + t, qreg(b, s_ + 4) + t
                c1, c2 = V_COS + b * 32 + s_ * 4 + t, V_COS + b * 32 + (s_ + 4) * 4 + t
                s1, s2 = V_SIN + b * 32 + s_ * 4 + t, V_SIN + b * 32 + (s_ + 4) * 4 + t
                x0, x1, y0, y1, a0, a1, b0, b1, e0, e1, f0, f1, T, T1 = range(V_PT, V_PT + 14)
                unpack(A, x0, x1, q1); unpack(A, y0, y1, q2)
                unpack(A, a0, a1, c1); unpack(A, b0, b1, s1); unpack(A, e0, e1, c2); unpack(A, f0, f1, s2)
                if opt.get("rope_fast"):
                    A.I(f"v_mul_f32 v{a0}, v{x0}, v{a0}"); A.I(f"v_mul_f32 v{a1}, v{x1}, v{a1}")
                    A.I(f"v_mul_f32 v{e0}, v{y0}, v{e0}"); A.I(f"v_mul_f32 v{e1}, v{y1}, v{e1}")
                    A.I(f"v_fma_f32 v{a0}, -v{y0}, v{b0}, v{a0}"); A.I(f"v_fma_f32 v{a1}, -v{y1}, v{b1}, v{a1}")
                    A.I(f"v_fma_f32 v{e0}, v{x0}, v{f0}, v{e0}"); A.I(f"v_fma_f32 v{e1}, v{x1}, v{f1}, v{e1}")
                else:
                    A.I(f"v_mul_f32 v{a0}, v{x0}, v{a0}"); A.I(f"v_mul_f32 v{a1}, v{x1}, v{a1}")
                    A.I(f"v_mul_f32 v{b0}, v{y0}, v{b0}"); A.I(f"v_mul_f32 v{b1}, v{y1}, v{b1}")
                    A.I(f"v_mul_f32 v{e0}, v{y0}, v{e0}"); A.I(f"v_mul_f32 v{e1}, v{y1}, v{e1}")
                    A.I(f"v_mul_f32 v{f0}, v{x0}, v{f0}"); A.I(f"v_mul_f32 v{f1}, v{x1}, v{f1}")
                    rnd2(A, a0, a1, T); rnd2(A, b0, b1, T1); rnd2(A, e0, e1, T); rnd2(A, f0, f1, T1)
                    A.I(f"v_sub_f32 v{a0}, v{a0}, v{b0}"); A.I(f"v_sub_f32 v{a1}, v{a1}, v{b1}")
                    A.I(f"v_add_f32 v{e0}, v{e0}, v{f0}"); A.I(f"v_add_f32 v{e1}, v{e1}, v{f1}")
                    rnd2(A, a0, a1, T); rnd2(A, e0, e1, T1)
                for r in (a0, a1, e0, e1):
                    A.I(f"v_mul_f32 v{r}, s39, v{r}")
                A.I(f"v_cvt_pk_bf16_f32 v{q1}, v{a0}, v{a1}")
                A.I(f"v_cvt_pk_bf16_f32 v{q2}, v{e0}, v{e1}")
    A.I("s_waitcnt vmcnt(32)")
    rope(0)
    A.extend(dma_stage(A))
    A.extend(dma_stage(A))
    A.I("s_waitcnt vmcnt(24)")
    rope(1)
    for i in range(128):
        A.I(f"v_accvgpr_write_b32 a{A_O+i}, 0")
    A.I(f"v_mov_b32 v{V_L[0]}, 0")
    A.I(f"v_mov_b32 v{V_L[1]}, 0")
    A.I("s_waitcnt vmcnt(16)")
    A.I("s_barrier")
    for s_ in range(8):
        A.I(f"ds_read_b128 {a(A_K+4*s_,4)}, v{V_A} offset:{s_*1024}", tag=("ldK", s_))
    A.I("s_waitcnt lgkmcnt(0)")
    for b in range(2):
        for s_ in range(8):
            C = "0" if s_ == 0 else v(V_S[b], 16)
            A.I(f"v_mfma_f32_32x32x16_bf16 {v(V_S[b],16)}, {a(A_K+4*s_,4)}, {v(qreg(b,s_),4)}, {C}")
    A.I("s_nop 7"); A.I("s_nop 7")
    def rowmax(b, dst, tmp):
        S = V_S[b]
        A.I(f"v_max3_f32 v{dst}, v{S}, v{S+1}, v{S+2}")
        for r in range(3, 15, 2):
            A.I(f"v_max3_f32 v{dst}, v{dst}, v{S+r}, v{S+r+1}")
        A.I(f"v_max_f32 v{dst}, v{dst}, v{S+15}")
        A.I(f"v_mov_b32 v{tmp}, v{dst}")
        A.I("s_nop 1")
        A.I(f"v_permlane32_swap_b32 v{dst}, v{tmp}")
        A.I(f"v_max_f32 v{dst}, v{dst}, v{tmp}")
    for b in range(2):
        rowmax(b, V_R, V_R + 1)
        for r in range(16):
            A.I(f"v_sub_f32 v{V_S[b]+r}, v{V_S[b]+r}, v{V_R}")
        for r in range(16):
            A.I(f"v_sub_f32 v{V_NM[b]+r}, 0, v{V_R}")
    pro_start = len(A.ins)
    pro = G.emit_slots(-1, 0, 32) + G.emit_slots(0, 0, 16)
    resolve_lgkm(A.ins, pro)
    A.extend(pro)
    dma = dma_stage(A)
    ex_a = {}
    ex_b = {}
    ex_c = {}
    ex_a[("pre", 16)] = [mk(f"v_add_u32 v{V_A}, 0x8000, v{V_A}"), mk(f"v_and_b32 v{V_A}, 0x1ffff, v{V_A}")]
    ex_a[16] = [mk("s_waitcnt vmcnt(8)"), mk("s_barrier")]
    dslots = opt.get("dma_slots", [("a", 20), ("a", 24), ("b", 2), ("b", 8), ("b", 16), ("b", 22), ("c", 2), ("c", 8)])
    exs = dict(a=ex_a, b=ex_b, c=ex_c)
    groups = [dma[0:3], [dma[3]], [dma[4]], [dma[5]], dma[6:9], [dma[9]], [dma[10]], dma[11:14]]
    if opt.get("nodma"):
        groups = [[x for x in g if x.kind != "dma"] for g in groups]
    for (sec, t), g in zip(dslots, groups):
        exs[sec].setdefault(t, []).extend(g)
    ex_c.setdefault(15, []).extend([mk(f"s_cmp_lt_u32 s{S_OFF}, {34*32768}"), mk("s_cbranch_scc1 L_loop")])
    body = G.emit_slots(2, 16, 32, ex_a) + G.emit_slots(3, 0, 32, ex_b) + G.emit_slots(4, 0, 16, ex_c)
    resolve_lgkm(body, body)
    if opt.get("align"):
        A.raw(f".p2align {opt['align']}")
    A.label("L_loop")
    A.extend(body)
    tail = G.emit_slots(62, 16, 32) + G.emit_slots(63, 0, 32, {("pre", 8): [mk("s_waitcnt lgkmcnt(0)")]})
    resolve_lgkm(body, tail)
    A.extend(tail)
    A.I("s_nop 7"); A.I("s_nop 7")
    for b in range(2):
        A.I(f"v_mov_b32 v{V_R+b}, v{V_L[b]}")
    A.I("s_nop 1")
    for b in range(2):
        A.I(f"v_permlane32_swap_b32 v{V_L[b]}, v{V_R+b}")
    for b in range(2):
        A.I(f"v_add_f32 v{V_L[b]}, v{V_L[b]}, v{V_R+b}")
    for b in range(2):
        A.I(f"v_rcp_f32 v{V_L[b]}, v{V_L[b]}")
    A.I(f"s_add_u32 s35, s{S_QOFF}, 8192")
    E = 112
    idx = 0
    for b in range(2):
        so = f"s{S_QOFF}" if b == 0 else "s35"
        for db in range(4):
            O = A_O + (b * 4 + db) * 16
            for tp in range(2):
                base = E + (idx % 4) * 12; idx += 1
                x = base; pk = base + 8
                for r in range(8):
                    A.I(f"v_accvgpr_read_b32 v{x+r}, a{O+tp*8+r}")
                for r in range(8):
                    A.I(f"v_mul_f32 v{x+r}, v{x+r}, v{V_L[b]}")
                for r in range(4):
                    A.I(f"v_cvt_pk_bf16_f32 v{pk+r}, v{x+2*r}, v{x+2*r+1}")
                A.I("s_nop 1")
                A.I(f"v_permlane32_swap_b32 v{pk}, v{pk+2}")
                A.I(f"v_permlane32_swap_b32 v{pk+1}, v{pk+3}")
                A.I(f"buffer_store_dwordx4 {v(pk,4)}, v{V_IO}, {s(S_OUT,4)}, {so} offen offset:{db*64+tp*32}")
    A.label("L_attn_done")
    A.I("s_endpgm")
    main_end = len(A.ins)
    for b in range(2):
        for sid in G.sites[b]:
            A.label(f"L_tramp{sid}")
            A.I(f"s_mov_b32 s{S_SITE}, {sid}")
            A.I(f"s_branch L_rare{b}")
    rare_seqs = []
    for b in range(2):
        st = len(A.ins)
        A.label(f"L_rare{b}")
        A.I("s_nop 7"); A.I("s_nop 7")
        d, f = V_R, V_R + 1
        rowmax(b, d, f)
        A.I(f"v_max_f32 v{d}, 0, v{d}")
        A.I(f"v_exp_f32_e64 v{f}, -v{d}")
        for r in range(16):
            A.I(f"v_sub_f32 v{V_S[b]+r}, v{V_S[b]+r}, v{d}")
        for r in range(16):
            A.I(f"v_sub_f32 v{V_NM[b]+r}, v{V_NM[b]+r}, v{d}")
        A.I(f"v_mul_f32 v{V_L[b]}, v{V_L[b]}, v{f}")
        for c in range(0, 64, 8):
            O = A_O + b * 64 + c
            for r in range(8):
                A.I(f"v_accvgpr_read_b32 v{V_R+2+r}, a{O+r}")
            for r in range(8):
                A.I(f"v_mul_f32 v{V_R+2+r}, v{V_R+2+r}, v{f}")
            for r in range(8):
                A.I(f"v_accvgpr_write_b32 a{O+r}, v{V_R+2+r}")
        for k in range(8):
            t0 = V_R + 2 + (k & 1) * 2
            A.I(f"v_exp_f32 v{t0}, v{V_S[b]+2*k}")
            A.I(f"v_exp_f32 v{t0+1}, v{V_S[b]+2*k+1}")
            A.I("s_nop 0")
            if k == 0:
                A.I(f"v_add_f32 v{V_LS[b]}, v{t0}, v{t0+1}")
            else:
                A.I(f"v_add_f32 v{V_LS[b]}, v{V_LS[b]}, v{t0}")
                A.I(f"v_add_f32 v{V_LS[b]}, v{V_LS[b]}, v{t0+1}")
            A.I(f"v_cvt_pk_bf16_f32 v{V_P[b]+k}, v{t0}, v{t0+1}")
        A.I("s_nop 1")
        for sid in G.sites[b][:-1]:
            A.I(f"s_cmp_eq_u32 s{S_SITE}, {sid}")
            A.I(f"s_cbranch_scc1 L_ret{sid}")
        A.I(f"s_branch L_ret{G.sites[b][-1]}")
        rare_seqs.append(A.ins[st:])
    li = [i for i, x in enumerate(A.ins) if x.label == "L_loop"][0]
    trace = A.ins[:li] + body + body + A.ins[li + 1 + len(body):main_end]
    probs = check_hazards(trace, "attn")
    verify_lgkm(trace)
    for rs in rare_seqs:
        probs += check_hazards(rs, "rare")
    kd = f"""
.amdhsa_kernel {name}
  .amdhsa_next_free_vgpr 480
  .amdhsa_next_free_sgpr 64
  .amdhsa_accum_offset 256
  .amdhsa_group_segment_fixed_size 0
  .amdhsa_kernarg_size 112
  .amdhsa_user_sgpr_count 2
  .amdhsa_user_sgpr_kernarg_segment_ptr 1
  .amdhsa_system_sgpr_workgroup_id_x 1
  .amdhsa_float_denorm_mode_32 3
  .amdhsa_float_denorm_mode_16_64 3
.end_amdhsa_kernel
"""
    return A, kd, probs, f"; @launch kernel={name} grid=(256,1,1) block=(256,1,1) lds=131072"

def build(opt, path):
    P, pkd, pp, pl = gen_prep(opt)
    T, tkd, tp, tl = gen_attn(opt)
    for x in pp + tp:
        print("HAZARD", x)
    launches = []
    if not opt.get("noprep"):
        launches.append(pl)
    if not opt.get("noattn"):
        launches.append(tl)
    txt = HEADER + "\n".join(launches) + "\n" + '.amdgcn_target "amdgcn-amd-amdhsa--gfx950"\n.text\n'
    txt += T.text() + P.text()
    txt += '.section .rodata,"a"\n.p2align 6\n' + tkd + ".p2align 6\n" + pkd
    open(path, "w").write(txt)

if __name__ == "__main__":
    import json
    opt = json.loads(sys.argv[2]) if len(sys.argv) > 2 else {}
    build(opt, sys.argv[1])
```
